```python
import torch

def _softmax(x, axis=-1):
    return torch.softmax(x, dim=axis)
def _gelu(x):
    return torch.nn.functional.gelu(x, approximate="tanh")
def _silu(x):
    return torch.nn.functional.silu(x)
def _sigmoid(x):
    return torch.sigmoid(x)
def _layernorm(x, axis=-1, eps=1e-5):
    m = x.mean(dim=axis, keepdim=True)
    v = x.var(dim=axis, keepdim=True, unbiased=False)
    return (x - m) / torch.sqrt(v + eps)
def _scatter_add(tgt, idx, src, axis=0):
    return tgt.clone().index_add_(axis, idx, src)
def _segment_sum(src, seg, n):
    out = torch.zeros((n,) + src.shape[1:], dtype=src.dtype)
    return out.index_add_(0, seg, src)
def _pad(x, pw):
    flat = tuple(v for pair in reversed(pw) for v in pair)
    return torch.nn.functional.pad(x, flat)

kernel_name = 'parallel_sum__softmax_full_mha__glu_gated_bilinear__prompt'

def setup_inputs():

    _w = (lambda a: (lambda t: t.to(torch.bfloat16) if t.is_floating_point() else t)(torch.as_tensor(a)))
    def _A_setup():
        B, S, D = 1, 2048, 1024
        return {
            "x": _w((lambda *s: torch.randn(*s, dtype=torch.bfloat16) * 0.05)(B, S, D)),
            "wqkv": _w((lambda *s: torch.randn(*s, dtype=torch.bfloat16) * 0.05)(D, 3 * D)),
            "wo": _w((lambda *s: torch.randn(*s, dtype=torch.bfloat16) * 0.05)(D, D)),
        }
    _A_in = _A_setup()

    def _B_setup():
        B, S, D, F = 1, 2048, 1024, 3584
        return {
            "x": _w((lambda *s: torch.randn(*s, dtype=torch.bfloat16) * 0.05)(B, S, D)),
            "w_gate": _w((lambda *s: torch.randn(*s, dtype=torch.bfloat16) * 0.8)(D, F) * (D ** -0.5)),
            "w_up": _w((lambda *s: torch.randn(*s, dtype=torch.bfloat16) * 0.8)(D, F) * (D ** -0.5)),
            "w_down": _w((lambda *s: torch.randn(*s, dtype=torch.bfloat16) * 0.8)(F, D) * (F ** -0.5)),
        }
    _B_in = _B_setup()

    return {
        "A_x": _A_in["x"],
        "A_wqkv": _A_in["wqkv"],
        "A_wo": _A_in["wo"],
        "B_x": _B_in["x"],
        "B_w_gate": _B_in["w_gate"],
        "B_w_up": _B_in["w_up"],
        "B_w_down": _B_in["w_down"],
    }

def reference(A_x, A_wqkv, A_wo, B_x, B_w_gate, B_w_up, B_w_down):
    def _A_ref(x, wqkv, wo):
        B, S, D = x.shape
        H = 32; Dh = D // H
        qkv = (lambda x, *d: x.permute(*d))((x @ wqkv).reshape(B, S, 3, H, Dh), 2, 0, 3, 1, 4)
        q, k, v = qkv[0], qkv[1], qkv[2]
        scale = Dh ** -0.5
        scores = torch.einsum("bhqd,bhkd->bhqk", q, k) * scale
        p = _softmax(scores, axis=-1)
        o = torch.einsum("bhqk,bhkd->bhqd", p, v)
        return (lambda x, *d: x.permute(*d))(o, 0, 2, 1, 3).reshape(B, S, D) @ wo

    def _B_ref(x, w_gate, w_up, w_down):
        g = torch.einsum("bsd,df->bsf", x, w_gate)
        u = torch.einsum("bsd,df->bsf", x, w_up)
        h = g * u
        return torch.einsum("bsf,fd->bsd", h, w_down)

    x = A_x
    xn = _layernorm(x, axis=-1)
    return x + _A_ref(xn, A_wqkv, A_wo) + _B_ref(xn, B_w_gate, B_w_up, B_w_down)
```

```python
KPREFIX = "parallel_sum__softmax_full_mha__glu_gated_bilinear__prompt"
WS_XN = 0
WS_QF = 4 << 20
WS_KV = 8 << 20
WS_A2 = 16 << 20
A2_BYTES = 144 * 128 * 1024

class Asm:
    def __init__(self):
        self.lines = []
    def __call__(self, s=""):
        for l in s.split("\n"):
            l = l.strip()
            if not l: continue
            if l.endswith(":") or l.startswith("."):
                self.lines.append(l)
            else:
                self.lines.append("    " + l)
    def text(self):
        return "\n".join(self.lines) + "\n"

def v(a, n=1):
    return f"v{a}" if n == 1 else f"v[{a}:{a+n-1}]"
def a_(a, n=1):
    return f"a{a}" if n == 1 else f"a[{a}:{a+n-1}]"
def s(a, n=1):
    return f"s{a}" if n == 1 else f"s[{a}:{a+n-1}]"

def header(A, name):
    A(f""".text
.globl {name}
.p2align 8
.type {name},@function
{name}:""")

def desc(name, vgpr, acc, sgpr=102):
    return f""".section .rodata,"a"
.p2align 6
.amdhsa_kernel {name}
  .amdhsa_next_free_vgpr {vgpr}
  .amdhsa_next_free_sgpr {sgpr}
  .amdhsa_accum_offset {acc}
  .amdhsa_group_segment_fixed_size 0
  .amdhsa_kernarg_size 80
  .amdhsa_user_sgpr_count 2
  .amdhsa_user_sgpr_kernarg_segment_ptr 1
  .amdhsa_system_sgpr_workgroup_id_x 1
  .amdhsa_float_denorm_mode_32 3
.end_amdhsa_kernel
"""

def srd(A, d, lo, hi, off, nbytes):
    if off == 0:
        A(f"s_mov_b32 s{d}, s{lo}\ns_mov_b32 s{d+1}, s{hi}")
    else:
        A(f"s_add_u32 s{d}, s{lo}, {off}\ns_addc_u32 s{d+1}, s{hi}, 0")
    A(f"s_mov_b32 s{d+2}, {nbytes}\ns_mov_b32 s{d+3}, 0x20000")

def interleave(mfmas, fillers_at):
    out = []
    for i, m in enumerate(mfmas):
        out.append(m)
        out += fillers_at.get(i, [])
    return "\n".join(out)
```

```python
import re, sys
def regs(tok):
    tok = tok.strip()
    m = re.fullmatch(r'([vas])\[(\d+):(\d+)\]', tok)
    if m: return [(m.group(1), i) for i in range(int(m.group(2)), int(m.group(3))+1)]
    m = re.fullmatch(r'([vas])(\d+)', tok)
    if m: return [(m.group(1), int(m.group(2)))]
    if tok in ('vcc',): return [('s', 'vcc')]
    if tok == 'm0': return [('s', 'm0')]
    if tok == 'exec': return [('s','exec')]
    return []
TRANS = ('v_exp_f32','v_log_f32','v_rcp_f32','v_rsq_f32','v_sqrt_f32')
class I: pass
def parse(line):
    line = line.split(';')[0].strip()
    if not line or line.endswith(':') or line.startswith('.'): return None
    p = line.split(None, 1)
    op = p[0]; ops = []
    if len(p) > 1:
        ops = [o.strip() for o in p[1].split(',')]
        last = ops[-1].split()
        mods = last[1:]; ops[-1] = last[0] if last else ''
    else: mods = []
    x = I(); x.op = op; x.text = line; x.ws = 1; x.w = []; x.r = []; x.kind = 'other'; x.mods = mods
    R = [regs(o) for o in ops]
    fl = lambda L: [e for l in L for e in l]
    if op == 's_nop': x.ws = int(ops[0], 0) + 1
    elif op.startswith('v_mfma') or op.startswith('v_smfmac'):
        x.kind = 'mfma'; x.passes = 8 if '32x32' in op else 4
        x.w = R[0]; x.ab = R[1] + R[2]; x.c = R[3] if op.startswith('v_mfma') else R[0]
        x.r = x.ab + x.c + (R[3] if op.startswith('v_smfmac') else [])
    elif op.startswith('v_'):
        x.kind = 'valu'
        if op.startswith('v_cmp'):
            x.w = R[0]; x.r = fl(R[1:])
        elif 'permlane' in op and 'swap' in op:
            x.w = R[0] + R[1]; x.r = R[0] + R[1]
        else:
            x.w = R[0]; x.r = fl(R[1:])
            if op.startswith(('v_fmac', 'v_fma_mix', 'v_dot2c', 'v_writelane')): x.r += R[0]
            if op.startswith('v_cndmask') and len(ops) == 3: x.r += [('s','vcc')]
    elif op.startswith('ds_'):
        x.kind = 'ds'
        if 'read' in op: x.w = R[0]; x.r = fl(R[1:])
        else: x.r = fl(R)
    elif op.startswith(('buffer_', 'global_')):
        x.kind = 'vmem'
        if 'lds' in mods or 'lds' in line.split(): x.r = fl(R) + [('s','m0')]; x.dma = True
        elif 'load' in op: x.w = R[0]; x.r = fl(R[1:])
        else:
            x.r = fl(R); x.sdata = R[0] if op.startswith('buffer') else R[1]
            x.wide = 'x4' in op or 'x3' in op
    elif op.startswith('s_'):
        x.kind = 'salu'
        if op.startswith(('s_cmp', 's_cbranch', 's_branch', 's_waitcnt', 's_barrier', 's_endpgm', 's_setprio', 's_sleep')): x.r = fl(R)
        else: x.w = R[0]; x.r = fl(R[1:])
    return x
def need(p, c):
    n = 0
    pw = set(p.w); cr = set(c.r); cw = set(c.w)
    if p.kind == 'valu':
        vw = {r for r in pw if r[0] != 's'}; sw = pw - vw
        if c.kind == 'mfma' and vw & cr: n = max(n, 2)
        if c.kind == 'valu':
            if 'permlane' in c.op and vw & cr: n = max(n, 2)
            if 'dpp' in c.text or 'row_' in c.text or 'quad_perm' in c.text:
                if vw & cr: n = max(n, 2)
            if c.op.startswith(('v_readlane', 'v_readfirstlane')) and vw & cr: n = max(n, 1)
            if p.op in TRANS and c.op not in TRANS and vw & cr: n = max(n, 1)
            if sw & cr: n = max(n, 2)
        if c.kind == 'vmem' and sw & cr: n = max(n, 5)
        if p.op in TRANS and c.kind in ('vmem', 'ds') and vw & cr: n = max(n, 1)
    if p.kind == 'mfma':
        big = 12 if p.passes == 8 else 8
        if c.kind == 'mfma':
            if pw & set(c.ab): n = max(n, big)
            if pw & set(c.c):
                if not (p.w == c.c and p.passes == c.passes): n = max(n, big - 2)
            elif pw & cw: n = max(n, big - 2)
        elif c.kind in ('valu', 'ds', 'vmem'):
            if pw & (cr | cw): n = max(n, big)
        if c.kind == 'valu' and set(p.c) & cw: n = max(n, 7 if p.passes == 8 else 3)
    if p.kind == 'salu' and ('s','m0') in pw and getattr(c, 'dma', False): n = max(n, 1)
    if p.kind == 'vmem' and getattr(p, 'wide', False) and set(p.sdata) & cw:
        n = max(n, 2 if c.kind == 'valu' else 1)
    return n
def check_seq(seq, tag, start=0):
    bad = 0
    for j in range(start, len(seq)):
        c = seq[j]; d = 0
        for i in range(j-1, max(-1, j-24), -1):
            p = seq[i]
            if p.op in ('s_branch', 's_endpgm'): break
            n = need(p, c)
            if n > d:
                print(f"HAZARD[{tag}] need {n} have {d}: '{p.text}' -> '{c.text}'"); bad += 1
            d += p.ws
            if d >= 20: break
    return bad
def check(text):
    lines = text.split('\n')
    ins = []; labels = {}
    for l in lines:
        t = l.split(';')[0].strip()
        if t.endswith(':'): labels[t[:-1]] = len(ins)
        x = parse(l)
        if x: ins.append(x)
    bad = check_seq(ins, 'lin')
    for k, x in enumerate(ins):
        if x.op.startswith(('s_cbranch', 's_branch')):
            tgt = x.text.split()[1]
            if tgt in labels:
                t = labels[tgt]
                pre = [y for y in ins[max(0, k-24):k]]
                for q in range(len(pre)-1, -1, -1):
                    if pre[q].op in ('s_branch', 's_endpgm'): pre = pre[q+1:]; break
                z = parse('s_nop 0')
                seq = pre + [z] + ins[t:t+24]
                bad += check_seq(seq, 'br->' + tgt, len(pre)+1)
    return bad
if __name__ == '__main__':
    print("hazards:", check(open(sys.argv[1]).read()))
```

```python
from common import *
Q0, K0, V0, PB, T0, S0, O0, L0, ON, M0_ = 8, 24, 40, 56, 64, 80, 112, 144, 152, 156
def r4(b): return f"v[{b}:{b+3}]"
def r16(b): return f"v[{b}:{b+15}]"
def B32(d, a, b, c): return f"v_mfma_f32_32x32x16_bf16 {r16(d)}, {r4(a)}, {r4(b)}, {r16(c)}"
def B16(d, a, b): return f"v_mfma_f32_16x16x32_bf16 {r4(d)}, {r4(a)}, {r4(b)}, {r4(d)}"
def QK(u, j):
    kt, qt = u // 2, u % 2
    S = S0 + 16 * (u % 2)
    return B32(S, K0 + 8 * (kt % 2) + 4 * j, Q0 + 8 * qt + 4 * j, (M0_ + 16 * qt) if j == 0 else S)
def PV(u, j):
    kt, qt = u // 2, u % 2
    return B32(O0 + 16 * qt, V0 + 8 * (kt % 2) + 4 * j, PB + 4 * j, O0 + 16 * qt)
def LL(u, j): return B16(L0 + 4 * (u % 2), ON, PB + 4 * j)
def e(u, k): return f"v_exp_f32 v{T0+k}, v{S0 + 16*(u%2) + k}"
def c(k): return f"v_cvt_pk_bf16_f32 v{PB+k}, v{T0+2*k}, v{T0+2*k+1}"
def rd(kt, which, j):
    off = ((kt // 4) % 4) * 16384 + (kt % 4) * 4096 + (2048 if which == 'V' else 0) + 1024 * j
    base = (K0 if which == 'K' else V0) + 8 * (kt % 2) + 4 * j
    return f"ds_read_b128 {r4(base)}, v1 offset:{off}"
def slot(u, x):
    seq = [QK(u+1, 0), e(u,0), c(7), e(u,1), e(u,2),
           QK(u+1, 1), c(0), e(u,3), e(u,4), c(1),
           PV(u-1, 1), e(u,5), e(u,6), c(2), e(u,7),
           LL(u-1, 1), c(3), e(u,8), e(u,9),
           PV(u, 0), c(4), e(u,10), e(u,11), e(u,12),
           LL(u, 0), c(5), e(u,13), e(u,14), c(6), e(u,15)]
    out = []
    for i, s_ in enumerate(seq):
        out += x.get(i, []); out.append(s_)
    return "\n".join(out)
def dma(sl):
    return [f"s_add_u32 m0, s20, {sl*16384}"] + [f"buffer_load_dwordx4 v2, s[8:11], s21 offen offset:{1024*i} lds" for i in range(4)] + ["s_add_u32 s21, s21, 16384"]

def gen_att(name):
    A = Asm(); header(A, name); L = f"L_{name}"
    A(f"""
    s_cmp_ge_u32 s2, 256
    s_cbranch_scc1 {L}_end
    s_load_dwordx2 s[6:7], s[0:1], 72
    s_and_b32 s30, s2, 7
    s_lshr_b32 s31, s2, 3
    s_and_b32 s32, s31, 3
    s_lshl_b32 s30, s30, 2
    s_add_u32 s30, s30, s32          ; head
    s_lshr_b32 s31, s31, 2           ; q block
    v_lshrrev_b32 v3, 6, v0
    v_and_b32 v0, 63, v0
    v_readfirstlane_b32 s33, v3      ; w
    v_lshlrev_b32 v1, 4, v0
    s_lshl_b32 s20, s33, 12
    v_add_u32 v2, s20, v1
    s_lshl_b32 s34, s31, 3
    s_lshl_b32 s35, s33, 1
    s_add_u32 s34, s34, s35
    s_lshl_b32 s35, s30, 18
    s_add_u32 s35, s35, {WS_KV}
    s_lshl_b32 s36, s30, 17
    s_lshl_b32 s37, s34, 11
    s_add_u32 s36, s36, s37
    s_mov_b32 s40, 0
    s_waitcnt lgkmcnt(0)
    """)
    srd(A, 8, 6, 7, "s35", 256 << 10)
    srd(A, 12, 6, 7, WS_QF, 4 << 20)
    srd(A, 16, 6, 7, WS_A2, 4 << 20)
    for k in range(32): A(f"v_mov_b32 v{M0_+k}, 0")
    A(f"{L}_restart:\ns_mov_b32 s21, 0")
    for i in range(4):
        A(f"buffer_load_dwordx4 {r4(Q0+4*i)}, v1, s[12:15], s36 offen offset:{1024*i}")
    for st in range(3):
        d = dma(st); A(d[0]); A("s_nop 0"); A("\n".join(d[1:]))
    A(f"""
    v_lshrrev_b32 v4, 2, v0
    v_xor_b32 v4, v4, v0
    v_bfe_u32 v4, v4, 2, 1
    v_add_u32 v4, -1, v4
    v_and_b32 v{ON}, 0x3f803f80, v4
    v_mov_b32 v{ON+1}, v{ON}
    v_mov_b32 v{ON+2}, v{ON}
    v_mov_b32 v{ON+3}, v{ON}
    """)
    for k in list(range(V0, V0+16)) + list(range(PB, PB+8)) + [T0+14, T0+15] + list(range(O0, O0+32)) + list(range(L0, L0+8)):
        A(f"v_mov_b32 v{k}, 0")
    A(f"s_mov_b32 s22, 4\ns_waitcnt vmcnt(8)\ns_barrier")
    A(rd(0, 'K', 0)); A(rd(0, 'K', 1)); A(rd(0, 'V', 0)); A(rd(0, 'V', 1))
    A("s_waitcnt lgkmcnt(0)")
    A(QK(0, 0)); A(QK(0, 1)); A("s_nop 7\ns_nop 3")
    A(f"{L}_loop:")
    for u in range(32):
        kt = u // 2; x = {}
        if u % 2 == 0:
            x[3] = [rd(kt+1, 'K', 0)]; x[7] = [rd(kt+1, 'K', 1)]
            x[19] = ["s_waitcnt lgkmcnt(2)"]
        else:
            x[0] = ["s_waitcnt lgkmcnt(0)"]
            x[12] = [rd(kt+1, 'V', 0)]; x[14] = [rd(kt+1, 'V', 1)]
        if u % 8 == 5:
            x[21] = ["s_waitcnt vmcnt(4)"]; x[22] = ["s_barrier"]
            d = dma((u // 8 + 3) % 4)
            x[23] = [d[0]]; x[26] = [d[1]]; x[27] = [d[2]]; x[28] = [d[3]]; x[29] = [d[4], d[5]]
        if u == 31:
            x[26] = ["s_sub_u32 s22, s22, 1"]; x[27] = ["s_cmp_lg_u32 s22, 0"]
        A(slot(u, x))
    A(f"s_cbranch_scc1 {L}_loop")
    A(f"s_nop 0\n{c(7)}\ns_nop 1\n{PV(31, 1)}\n{LL(31, 1)}\ns_nop 7\ns_nop 3")
    A(f"""
    s_cmp_lg_u32 s40, 0
    s_cbranch_scc1 {L}_out
    v_add_f32 v4, |v{O0}|, |v{O0+16}|""")
    for k in range(1, 16):
        A(f"v_add_f32 v5, |v{O0+k}|, |v{O0+16+k}|\nv_add_f32 v4, v4, v5")
    A(f"""
    v_min_f32 v5, v{L0}, v{L0+4}
    v_add_f32 v6, v{L0}, v{L0+4}
    s_mov_b32 s41, 0x1f800000        ; 2^-64
    s_mov_b32 s42, 0x5f800000        ; 2^64
    s_mov_b32 s43, 0x7f000000
    v_cmp_le_f32 s[44:45], s41, v5
    v_cmp_ge_f32 s[46:47], s42, v6
    v_cmp_gt_f32 s[48:49], s43, v4
    s_nop 1
    s_and_b64 s[44:45], s[44:45], s[46:47]
    s_and_b64 s[44:45], s[44:45], s[48:49]
    s_cmp_eq_u64 s[44:45], -1
    s_cselect_b32 s41, 0, 1
    v_mov_b32 v5, s41
    v_mov_b32 v6, 0x10000
    v_lshl_add_u32 v4, s33, 2, v6
    ds_write_b32 v4, v5
    s_waitcnt vmcnt(0) lgkmcnt(0)
    s_barrier
    ds_read_b128 v[4:7], v6
    s_waitcnt lgkmcnt(0)
    v_or3_b32 v4, v4, v5, v6
    v_or_b32 v4, v4, v7
    s_nop 0
    v_readfirstlane_b32 s41, v4
    s_cmp_eq_u32 s41, 0
    s_cbranch_scc1 {L}_out
    s_mov_b32 s40, 1
    s_mov_b32 s21, 0
    v_mov_b32 v4, 0xff800000
    v_mov_b32 v5, 0xff800000
    {L}_mx:
    buffer_load_dwordx4 {r4(K0)}, v1, s[8:11], s21 offen
    buffer_load_dwordx4 {r4(K0+4)}, v1, s[8:11], s21 offen offset:1024
    s_add_u32 s21, s21, 4096
    s_waitcnt vmcnt(0)
    v_mfma_f32_32x32x16_bf16 {r16(S0)}, {r4(K0)}, {r4(Q0)}, 0
    v_mfma_f32_32x32x16_bf16 {r16(S0+16)}, {r4(K0)}, {r4(Q0+8)}, 0
    {B32(S0, K0+4, Q0+4, S0)}
    {B32(S0+16, K0+4, Q0+12, S0+16)}
    s_nop 7
    s_nop 3""")
    for k in range(0, 16, 2):
        A(f"v_max3_f32 v4, v4, v{S0+k}, v{S0+k+1}\nv_max3_f32 v5, v5, v{S0+16+k}, v{S0+17+k}")
    A(f"""
    s_cmp_lt_u32 s21, {256 << 10}
    s_cbranch_scc1 {L}_mx
    v_mov_b32 v6, v4
    v_mov_b32 v7, v5
    s_nop 1
    v_permlane32_swap_b32 v4, v6
    v_permlane32_swap_b32 v5, v7
    s_nop 1
    v_max_f32 v4, v4, v6
    v_max_f32 v5, v5, v7""")
    for k in range(16):
        A(f"v_sub_f32 v{M0_+k}, 0, v4\nv_sub_f32 v{M0_+16+k}, 0, v5")
    A(f"""s_branch {L}_restart
    {L}_out:
    s_waitcnt vmcnt(0)
    v_rcp_f32 v4, v{L0}
    v_rcp_f32 v5, v{L0+4}
    v_bfe_u32 v6, v0, 4, 1
    v_lshlrev_b32 v6, 10, v6
    v_lshrrev_b32 v7, 5, v0
    v_lshl_add_u32 v6, v7, 8, v6
    v_and_b32 v7, 15, v0
    v_lshl_add_u32 v6, v7, 4, v6""")
    for qt in range(2):
        o = O0 + 16 * qt
        for k in range(16): A(f"v_mul_f32 v{o+k}, v{4+qt}, v{o+k}")
        for hh in range(2):
            d = T0 + 8 * qt + 4 * hh; a = o + 4 * hh
            A(f"""v_cvt_pk_bf16_f32 v{d}, v{a}, v{a+1}
            v_cvt_pk_bf16_f32 v{d+1}, v{a+2}, v{a+3}
            v_cvt_pk_bf16_f32 v{d+2}, v{a+8}, v{a+9}
            v_cvt_pk_bf16_f32 v{d+3}, v{a+10}, v{a+11}
            buffer_store_dwordx4 {r4(d)}, v6, s[16:19], s36 offen offset:{2048*qt + 512*hh}""")
    A(f"{L}_end:\ns_endpgm")
    return A.text(), desc(name, 192, 192, 64), f"; @launch kernel={name} grid=(256,1,1) block=(256,1,1) lds={65536+64}"
```

```python
from common import *
SLOT = 36864
QSCALE = 32 ** -0.5 * 1.4426950408889634
import struct
def f2u(x): return struct.unpack('<I', struct.pack('<f', x))[0]
VX = [1, 2]
VQ = [[3, 4], [5, 6]]
VR = [[7, 8, 9, 10], [11, 12, 13, 14]]
VDX, VDQ, VDG = 15, 16, 17
ACCV0 = 24
NVT = 58
def acc(m, n, k=None):
    t = m * 8 + n
    if t < NVT: p, b = 'v', ACCV0 + 4 * t
    else: p, b = 'a', 144 + 4 * (t - NVT)
    if k is None: return f"{p}[{b}:{b+3}]"
    return p, b
def xf(par, n): return f"a[{32*par+4*n}:{32*par+4*n+3}]"
def wf(par, m, h=None):
    b = 64 + 40 * par + 4 * m
    if h is None: return f"a[{b}:{b+3}]"
    return f"a[{b+2*h}:{b+2*h+1}]"
SX, SW = 8, [12, 16, 20, 24, 28]
S_OX, S_OQ, S_OG = 40, 41, 42
S_MX, S_MW = 44, 45
S_CNT = 46

def wtile(var, m):
    if var == 'A':
        if m < 2: return ('Q', m, 0)
        if m < 6: return ('R', m - 2, 1024)
        return ('R', m - 6, 2048)
    return ('Q', m % 2, (m // 2) * 1024)
def wsrc(var, c):
    isq = (c == 0) if var == 'A' else (c < 3)
    return (VDQ, S_OQ) if isq else (VDG, S_OG)

def reads(var, st):
    slot = st % 4; par = st % 2; sel = slot // 2; base = (slot % 2) * SLOT
    X = [f"ds_read_b128 {xf(par, n)}, v{VX[sel]} offset:{base + 1024*n}" for n in range(8)]
    W = []
    for m in range(10):
        k, j, imm = wtile(var, m)
        r = (VQ if k == 'Q' else VR)[sel][j]
        W.append([f"ds_read_b64_tr_b16 {wf(par, m, h)}, v{r} offset:{base + imm + 512*h}" for h in range(2)])
    out = W[0] + X[:4] + W[1] + X[4:]
    for m in range(2, 10): out += W[m]
    return out
def dmas(var, slot):
    it = []
    it.append(f"s_add_u32 m0, s{S_MX}, {slot*SLOT}")
    for i in range(4):
        it.append(f"buffer_load_dwordx4 v{VDX}, s[{SX}:{SX+3}], s{S_OX} offen offset:{1024*i} lds")
    it.append(f"s_add_u32 m0, s{S_MW}, {slot*SLOT}")
    it.append(f"s_add_u32 s{S_OX}, s{S_OX}, 131072")
    for c in range(5):
        vo, so = wsrc(var, c)
        if c == 4: it.append(f"s_add_u32 m0, s{S_MW}, {slot*SLOT + 4096}")
        off = f" offset:{1024*c}" if 0 < c < 4 else ""
        if c == 4: it.append(f"s_add_u32 s{S_OQ}, s{S_OQ}, {32*6144}")
        it.append(f"buffer_load_dwordx4 v{vo}, s[{SW[c]}:{SW[c]+3}], s{so} offen{off} lds")
    it.append(f"s_add_u32 s{S_OG}, s{S_OG}, {32*7168}")
    return it
def merge(a, b):
    out = []; i = j = 0
    while i < len(a) or j < len(b):
        if j < len(b) and (i >= len(a) or j * len(a) <= i * len(b)):
            out.append(b[j]); j += 1
        else:
            out.append(a[i]); i += 1
    return out
def stage(var, st, vm, dma, rd, extra=None, B=8, LAST=73):
    par = st % 2
    mf = []
    for m in range(10):
        for n in range(8):
            if var == 'B' and m < 4: a, b = xf(par, n), wf(par, m)
            else: a, b = wf(par, m), xf(par, n)
            mf.append(f"v_mfma_f32_16x16x32_bf16 {acc(m,n)}, {a}, {b}, {acc(m,n)}")
    fill = {i: [] for i in range(80)}
    if rd:
        fill[B].append(f"s_waitcnt vmcnt({vm})"); fill[B+1].append("s_barrier")
        items = merge(reads(var, st + 1), dmas(var, st % 4) if dma else [])
        for j, it in enumerate(items):
            fill[B + 2 + (j * (LAST - B - 2)) // len(items)].append(it)
    if extra:
        for g, l in extra.items(): fill[g] += l
    return "s_waitcnt lgkmcnt(0)\n" + interleave(mf, fill)

def gen_gemm1(name):
    A = Asm()
    header(A, name)
    L = f"L_{name}"
    A(f"""
    s_cmp_ge_u32 s2, 256
    s_cbranch_scc1 {L}_end
    s_load_dwordx2 s[4:5], s[0:1], 8
    s_load_dwordx4 s[48:51], s[0:1], 32
    s_load_dwordx2 s[6:7], s[0:1], 72
    s_and_b32 s60, s2, 7            ; Hq
    s_lshr_b32 s61, s2, 3
    s_and_b32 s62, s61, 3           ; jj
    s_lshr_b32 s63, s61, 2
    v_lshrrev_b32 v18, 6, v0        ; w
    v_and_b32 v0, 63, v0            ; lane
    v_readfirstlane_b32 s64, v18
    v_lshrrev_b32 v19, 4, v0        ; g
    v_and_b32 v20, 15, v0           ; i16
    s_lshr_b32 s65, s64, 1          ; wr
    s_and_b32 s66, s64, 1           ; wc
    s_lshl_b32 s{S_MX}, s64, 12
    s_mul_i32 s{S_MW}, s64, 5120
    s_add_u32 s{S_MW}, s{S_MW}, 16384
    v_lshlrev_b32 v{VDX}, 4, v0
    v_add_u32 v{VDX}, s{S_MX}, v{VDX}
    ; W dma voffset: row = 8w + l/8, p = l%8
    v_lshrrev_b32 v21, 3, v0        ; l/8
    v_bfe_u32 v22, v0, 4, 1
    v_lshl_or_b32 v22, s66, 1, v22  ; s(row) | (w&1)<<1
    v_bfe_u32 v23, v0, 1, 2         ; p>>1
    v_xor_b32 v22, v22, v23
    v_lshlrev_b32 v22, 5, v22
    v_and_b32 v23, 1, v0
    v_lshl_or_b32 v22, v23, 4, v22  ; chunk*16
    v_lshl_add_u32 v21, s64, 3, v21 ; row
    v_mul_u32_u24 v{VDQ}, 6144, v21
    v_add_u32 v{VDQ}, v{VDQ}, v22
    v_mul_u32_u24 v{VDG}, 7168, v21
    v_add_u32 v{VDG}, v{VDG}, v22
    ; soffsets
    s_lshl_b32 s{S_OX}, s63, 14
    s_mov_b32 s{S_OQ}, 0
    s_mov_b32 s{S_OG}, 0
    s_lshl_b32 s52, s60, 8
    s_mul_i32 s53, s60, 896         ; 448*Hq*2
    s_cmp_eq_u32 s62, 3
    s_cbranch_scc1 {L}_setB
    s_lshl_b32 s54, s62, 7          ; jj*128
    s_cmp_eq_u32 s62, 2
    s_cselect_b32 s54, 2048, s54
    s_add_u32 s52, s52, s54
    s_lshl_b32 s54, s62, 8
    s_add_u32 s53, s53, s54
    s_waitcnt lgkmcnt(0)
    """)
    def wsrd(c, plo, colreg, coladd, total):
        d = SW[c]; comp = 1024 * c if c < 4 else 0
        A(f"s_add_u32 s57, s{colreg}, {coladd}")
        A(f"s_add_u32 s{d}, s{plo}, s57\ns_addc_u32 s{d+1}, s{plo+1}, 0")
        if comp: A(f"s_sub_u32 s{d}, s{d}, {comp}\ns_subb_u32 s{d+1}, s{d+1}, 0")
        A(f"s_sub_u32 s{d+2}, {total + comp}, s57\ns_mov_b32 s{d+3}, 0x20000")
    QB, GB = 1024 * 6144, 1024 * 7168
    wsrd(0, 4, 52, 0, QB); wsrd(1, 48, 53, 0, GB); wsrd(2, 50, 53, 0, GB); wsrd(3, 48, 53, 128, GB); wsrd(4, 50, 53, 128, GB)
    A(f"s_branch {L}_setdone\n{L}_setB:\ns_waitcnt lgkmcnt(0)")
    wsrd(0, 4, 52, 4096, QB); wsrd(1, 4, 52, 4096 + 128, QB); wsrd(2, 4, 52, 2048 + 128, QB)
    wsrd(3, 48, 53, 768, GB); wsrd(4, 50, 53, 768, GB)
    A(f"{L}_setdone:")
    srd(A, SX, 6, 7, WS_XN, 4 << 20)
    A(f"""
    v_lshlrev_b32 v{VX[0]}, 4, v0
    s_lshl_b32 s57, s65, 13
    v_add_u32 v{VX[0]}, s57, v{VX[0]}
    v_add_u32 v{VX[1]}, {2*SLOT}, v{VX[0]}
    v_mul_u32_u24 v21, 5120, v19          ; g*5120
    v_lshrrev_b32 v22, 2, v20             ; i/4
    v_lshl_add_u32 v21, v22, 7, v21
    v_and_b32 v22, 3, v0
    v_lshl_add_u32 v21, v22, 3, v21
    v_add_u32 v21, 16384, v21             ; base
    v_bfe_u32 v22, v0, 3, 1               ; (i/4)>>1
    v_and_b32 v23, 1, v19
    v_lshl_or_b32 v22, v23, 1, v22        ; s
    s_lshl_b32 s57, s66, 1
    s_lshl_b32 s58, s66, 11
    """)
    for j in range(2):
        A(f"""
        s_add_u32 s59, s57, {j}
        v_xor_b32 v23, s59, v22
        v_lshl_add_u32 v{VQ[0][j]}, v23, 5, v21
        v_add_u32 v{VQ[1][j]}, {2*SLOT}, v{VQ[0][j]}""")
    A("v_add_u32 v21, s58, v21")
    for t in range(4):
        A(f"""
        v_xor_b32 v23, {t}, v22
        v_lshl_add_u32 v{VR[0][t]}, v23, 5, v21
        v_add_u32 v{VR[1][t]}, {2*SLOT}, v{VR[0][t]}""")
    A(f"s_cmp_eq_u32 s62, 3\ns_cbranch_scc1 {L}_B")
    for var in 'AB':
        if var == 'B': A(f"{L}_B:")
        for st in range(4):
            for it in dmas(var, st):
                A(it)
                if it.startswith("s_add_u32 m0"): A("s_nop 0")
        for t in range(80):
            p, b = acc(t // 8, t % 8, 0)
            for k in range(4):
                A(f"v_mov_b32 v{b+k}, 0" if p == 'v' else f"v_accvgpr_write_b32 a{b+k}, 0")
        A(f"s_mov_b32 s{S_CNT}, 7\ns_waitcnt vmcnt(27)\ns_barrier")
        for r in reads(var, 0): A(r)
        A(f"{L}_loop{var}:")
        for st in range(4):
            ex = {76: [f"s_sub_u32 s{S_CNT}, s{S_CNT}, 1"], 77: [f"s_cmp_lg_u32 s{S_CNT}, 0"]} if st == 3 else None
            A(stage(var, st, 18, True, True, ex))
        A(f"s_cbranch_scc1 {L}_loop{var}")
        A(stage(var, 0, 18, False, True))
        A(stage(var, 1, 9, False, True))
        A(stage(var, 2, 0, False, True))
        A(stage(var, 3, 0, False, False))
        epilogue(A, var)
        A("s_endpgm")
    A(f"{L}_end:\ns_endpgm")
    return A.text(), desc(name, 488, 256, 80), f"; @launch kernel={name} grid=(256,1,1) block=(256,1,1) lds={4*SLOT}"

def epilogue(A, var):
    srd(A, 32, 6, 7, WS_QF, WS_A2 + A2_BYTES - WS_QF)
    KV, A2 = WS_KV - WS_QF, WS_A2 - WS_QF
    A(f"""
    v_lshlrev_b32 v1, 4, v0                ; l*16 (A2)
    v_lshlrev_b32 v2, 9, v19               ; g*512
    v_lshl_add_u32 v3, v20, 4, v2          ; Q / V voffset: g*512 + i16*16
    v_bfe_u32 v4, v0, 3, 1                 ; g'/2
    v_lshl_add_u32 v2, v4, 8, v2
    v_and_b32 v4, 7, v0                    ; (g'%2)*4 + i
    v_lshl_add_u32 v2, v4, 4, v2           ; K voffset
    s_lshl_b32 s52, s63, 3
    s_lshl_b32 s53, s65, 2
    s_add_u32 s52, s52, s53
    s_lshl_b32 s53, s60, 2
    s_add_u32 s53, s53, s66
    s_mul_i32 s54, s60, 14
    s_add_u32 s54, s54, 32
    s_lshl_b32 s55, s52, 11
    """)
    T = [4]
    def getv(m, n):
        p, b = acc(m, n, 0)
        if p == 'v': return b
        t = T[0]; T[0] = 4 + (T[0] - 4 + 4) % 16
        for k in range(4): A(f"v_accvgpr_read_b32 v{t+k}, a{b+k}")
        return t
    def pack_store(ra, rb, voff, soff, imm, scale=None, mul=None):
        if scale:
            for k in range(4): A(f"v_mul_f32 v{ra+k}, {scale}, v{ra+k}")
            for k in range(4): A(f"v_mul_f32 v{rb+k}, {scale}, v{rb+k}")
        if mul:
            for k in range(4): A(f"v_mul_f32 v{ra+k}, v{mul[0]+k}, v{ra+k}")
            for k in range(4): A(f"v_mul_f32 v{rb+k}, v{mul[1]+k}, v{rb+k}")
        A(f"""v_cvt_pk_bf16_f32 v{ra}, v{ra}, v{ra+1}
        v_cvt_pk_bf16_f32 v{ra+1}, v{ra+2}, v{ra+3}
        v_cvt_pk_bf16_f32 v{ra+2}, v{rb}, v{rb+1}
        v_cvt_pk_bf16_f32 v{ra+3}, v{rb+2}, v{rb+3}
        buffer_store_dwordx4 v[{ra}:{ra+3}], v{voff}, s[32:35], s{soff} offen offset:{imm}""")
    def hstore(mg, mu, ks2expr_reg):
        A(f"s_lshl_b32 s56, s{ks2expr_reg}, 17\ns_add_u32 s56, s56, s55\ns_add_u32 s56, s56, {A2}")
        for n in range(8):
            if n == 4: A("s_add_u32 s56, s56, 4096")
            ga, gb = getv(mg, n), getv(mg + 1, n)
            ua, ub = getv(mu, n), getv(mu + 1, n)
            pack_store(ga, gb, 1, 56, 1024 * (n % 4), mul=(ua, ub))
    if var == 'A':
        A(f"""
        s_cmp_eq_u32 s62, 2
        s_cbranch_scc1 L_g1epi_k
        s_lshl_b32 s57, s62, 1
        s_add_u32 s57, s57, s53                ; head
        s_lshl_b32 s57, s57, 17
        s_lshl_b32 s58, s52, 11
        s_add_u32 s57, s57, s58
        s_mov_b32 s58, 2048
        s_mov_b32 s59, 256
        s_mov_b32 s67, {hex(f2u(QSCALE))}
        s_branch L_g1epi_qk
        L_g1epi_k:
        s_lshl_b32 s57, s53, 18
        s_lshl_b32 s58, s52, 12
        s_add_u32 s57, s57, s58
        s_add_u32 s57, s57, {KV}
        s_mov_b32 s58, 4096
        s_mov_b32 s59, 128
        s_mov_b32 s67, 1.0
        v_mov_b32 v3, v2
        L_g1epi_qk:
        """)
        for n in range(8):
            if n % 2: A("s_add_u32 s68, s57, s59")
            pack_store(getv(0, n), getv(1, n), 3, 68 if n % 2 else 57, 0, scale="s67")
            if n % 2: A("s_add_u32 s57, s57, s58")
        A("s_lshl_b32 s57, s62, 2\ns_lshl_b32 s58, s66, 1\ns_add_u32 s57, s57, s58\ns_add_u32 s57, s57, s54")
        hstore(2, 6, 57)
        A("s_add_u32 s57, s57, 1")
        hstore(4, 8, 57)
    else:
        A(f"""
        s_lshl_b32 s57, s53, 18
        s_lshl_b32 s58, s52, 12
        s_add_u32 s57, s57, s58
        s_add_u32 s57, s57, {KV}
        s_add_u32 s58, s57, {2 << 18}         ; head + 2
        s_add_u32 s59, s58, 0
        """)
        for hh in range(2):
            so = 57 + hh
            for np_ in range(4):
                for t in range(2):
                    pack_store(getv(2*hh + t, 2*np_), getv(2*hh + t, 2*np_ + 1), 3, so, 2048 + 256 * t)
                A(f"s_add_u32 s{so}, s{so}, 4096")
        for n in range(8):
            pack_store(getv(4, n), getv(5, n), 2, 59, 128 * (n % 2))
            if n % 2: A("s_add_u32 s59, s59, 4096")
        A("s_add_u32 s57, s54, 12\ns_add_u32 s57, s57, s66")
        hstore(6, 8, 57)
```

```python
from common import *
from k_gemm1 import merge
ACC = 128
VA = [1, 2, 3, 4]
VW = [5, 6, 7, 8]
VT = [9, 10, 11, 12]
S_A, S_D, S_O, S_X, S_OUT = 8, 12, 16, 20, 24
S_OA, S_OW, S_M, S_CNT = 40, 41, 42, 43
def acc(t, n): b = ACC + 4 * (n * 4 + t); return b
def af(st, n): b = 32 * (st % 4) + 4 * n; return f"a[{b}:{b+3}]"
def wf(st, t, h=None):
    b = 128 + 16 * (st % 2) + 4 * t
    return f"a[{b}:{b+3}]" if h is None else f"a[{b+2*h}:{b+2*h+1}]"
def wload(j):
    if j >= 36: return []
    sr = S_D if j < 28 else S_O
    it = []
    if j == 28: it.append(f"s_lshl_b32 s{S_OW}, s64, 16")
    it.append(f"s_add_u32 m0, s{S_M}, {(j % 4) * 4096}")
    it += [f"buffer_load_dwordx4 v{VW[i]}, s[{sr}:{sr+3}], s{S_OW} offen offset:{1024*i} lds" for i in range(4)]
    it.append(f"s_add_u32 s{S_OW}, s{S_OW}, {4*65536}")
    return it
def aload(j):
    if j >= 36: return []
    it = []
    if j == 28: it.append(f"s_sub_u32 s{S_OA}, s{S_OA}, {144*131072}")
    it += [f"buffer_load_dwordx4 {af(j, n)}, v{VA[n//2]}, s[{S_A}:{S_A+3}], s{S_OA} offen offset:{1024*(n%2)}" for n in range(8)]
    it.append(f"s_add_u32 s{S_OA}, s{S_OA}, {4*131072}")
    return it
def treads(j):
    if j >= 36: return []
    return [f"ds_read_b64_tr_b16 {wf(j, t, h)}, v{VT[t]} offset:{(j%4)*4096 + 2048*h}" for t in range(4) for h in range(2)]
def nloads(j):
    return (4 if j + 1 < 36 else 0) + (8 if j < 36 else 0)
def step(st, extra=None):
    mf = []
    for n in range(8):
        for t in range(4):
            b = acc(t, n)
            mf.append(f"v_mfma_f32_16x16x32_bf16 v[{b}:{b+3}], {wf(st, t)}, {af(st, n)}, v[{b}:{b+3}]")
    fill = {i: [] for i in range(32)}
    items = merge(wload(st + 4) + aload(st + 3), treads(st + 1))
    for j, it in enumerate(items):
        fill[(j * 27) // max(1, len(items))].append(it)
    if extra:
        for g, l in extra.items(): fill[g] += l
    vm = nloads(st + 1) + nloads(st + 2)
    return f"s_waitcnt vmcnt({vm}) lgkmcnt(0)\n" + interleave(mf, fill)

def gen_gemm2(name):
    A = Asm(); header(A, name); L = "L_g2"
    A(f"""
    s_cmp_ge_u32 s2, 256
    s_cbranch_scc1 {L}_end
    s_load_dwordx2 s[4:5], s[0:1], 0
    s_load_dwordx2 s[48:49], s[0:1], 16
    s_load_dwordx4 s[52:55], s[0:1], 48
    s_load_dwordx2 s[6:7], s[0:1], 72
    s_and_b32 s60, s2, 7
    s_lshr_b32 s61, s2, 3
    s_lshr_b32 s62, s60, 1
    s_lshl_b32 s62, s62, 2
    s_lshr_b32 s63, s61, 3
    s_add_u32 s62, s62, s63          ; tb
    s_and_b32 s60, s60, 1
    s_lshl_b32 s60, s60, 3
    s_and_b32 s61, s61, 7
    s_add_u32 s63, s60, s61          ; cb
    v_lshrrev_b32 v18, 6, v0
    v_and_b32 v0, 63, v0
    v_readfirstlane_b32 s64, v18     ; w
    v_lshrrev_b32 v19, 4, v0         ; g
    v_and_b32 v20, 15, v0            ; i16
    v_lshlrev_b32 v21, 4, v0         ; l*16
    s_lshl_b32 s{S_M}, s64, 14
    s_lshl_b32 s{S_OW}, s64, 16
    s_add_u32 s65, s64, 32
    s_lshl_b32 s{S_OA}, s65, 17
    s_lshl_b32 s65, s62, 13
    s_add_u32 s{S_OA}, s{S_OA}, s65
    s_lshl_b32 s66, s63, 7
    """)
    for j in range(4):
        A(f"s_add_u32 s65, s64, {j}\ns_and_b32 s65, s65, 3\ns_lshl_b32 s65, s65, 11\nv_add_u32 v{VA[j]}, s65, v21")
    A(f"""
    v_bfe_u32 v22, v0, 1, 2
    v_xor_b32 v22, v22, v19          ; (p>>1)^s
    v_lshlrev_b32 v22, 5, v22
    v_and_b32 v23, 1, v0
    v_lshl_or_b32 v22, v23, 4, v22
    v_lshrrev_b32 v23, 3, v0
    v_lshl_add_u32 v{VW[0]}, v23, 11, v22
    v_add_u32 v{VW[1]}, 15360, v{VW[0]}
    v_add_u32 v{VW[2]}, {2*15360}, v{VW[0]}
    v_add_u32 v{VW[3]}, {3*15360}, v{VW[0]}
    v_lshlrev_b32 v13, 11, v20
    v_lshl_add_u32 v13, v19, 3, v13
    v_add_u32 v14, 32768, v13
    s_lshl_b32 s67, s62, 18
    s_lshl_b32 s65, s64, 16
    s_add_u32 s67, s67, s65
    s_add_u32 s67, s67, s66
    s_waitcnt lgkmcnt(0)
    """)
    srd(A, S_A, 6, 7, WS_A2, A2_BYTES)
    A(f"s_sub_u32 s68, {3584*2048}, s66\ns_sub_u32 s69, {1024*2048}, s66")
    srd(A, S_D, 52, 53, "s66", "s68")
    srd(A, S_O, 48, 49, "s66", "s69")
    srd(A, S_X, 4, 5, 0, 4 << 20)
    srd(A, S_OUT, 54, 55, 0, 4 << 20)
    def emit(its):
        for it in its:
            A(it)
            if it.startswith("s_add_u32 m0"): A("s_nop 0")
    for n in range(2):
        for t in range(4):
            b = 24 + 2 * (n * 4 + t)
            A(f"buffer_load_dwordx2 v[{b}:{b+1}], v{13+n}, s[{S_X}:{S_X+3}], s67 offen offset:{32*t}")
    emit(wload(0))
    for j in range(3): emit(wload(j + 1) + aload(j))
    A(f"""
    v_lshlrev_b32 v22, 2, v19
    v_lshrrev_b32 v23, 2, v20
    v_add_u32 v22, v22, v23          ; row
    v_bfe_u32 v23, v22, 1, 2         ; s
    v_lshlrev_b32 v22, 7, v22
    v_and_b32 v15, 3, v0
    v_lshl_add_u32 v22, v15, 3, v22
    v_add_u32 v22, s{S_M}, v22
    """)
    for t in range(4):
        A(f"v_xor_b32 v15, {t}, v23\nv_lshl_add_u32 v{VT[t]}, v15, 5, v22")
    for k in range(32, 128): A(f"v_mov_b32 v{ACC+k}, 0")
    A(f"s_mov_b32 s{S_CNT}, 6\ns_waitcnt vmcnt(36)")
    for r in treads(0): A(r)
    for n in range(2):
        for t in range(4):
            b = 24 + 2 * (n * 4 + t); d = acc(t, n)
            A(f"""v_lshlrev_b32 v{d}, 16, v{b}
            v_and_b32 v{d+1}, 0xffff0000, v{b}
            v_lshlrev_b32 v{d+2}, 16, v{b+1}
            v_and_b32 v{d+3}, 0xffff0000, v{b+1}""")
    A(f"{L}_loop:")
    for st in range(4):
        ex = {29: [f"s_sub_u32 s{S_CNT}, s{S_CNT}, 1"], 30: [f"s_cmp_lg_u32 s{S_CNT}, 0"]} if st == 3 else None
        A(step(st, ex))
    A(f"s_cbranch_scc1 {L}_loop")
    for st in range(24, 36): A(step(st))
    for j in range(1, 4):
        A(f"s_add_u32 s65, s64, {j}\ns_and_b32 s65, s65, 3\ns_mul_i32 s65, s65, 24576\ns_add_u32 s65, s65, {65536 + (j-1)*8192}\nv_add_u32 v{j}, s65, v21")
    A(f"s_mul_i32 s65, s64, 24576\ns_add_u32 s65, s65, 65536\nv_add_u32 v4, s65, v21")
    for j in range(1, 4):
        for k in range(8):
            b = ACC + 32 * j + 4 * k
            A(f"ds_write_b128 v{j}, v[{b}:{b+3}] offset:{1024*k}")
    A(f"""
    v_and_b32 v5, 1, v19
    v_lshlrev_b32 v5, 5, v5
    v_lshrrev_b32 v6, 1, v19
    v_lshl_add_u32 v5, v6, 4, v5
    v_lshl_add_u32 v5, v20, 11, v5
    v_add_u32 v6, 32768, v5
    s_waitcnt lgkmcnt(0)
    s_barrier""")
    for k in range(8):
        for j in range(3):
            b = 32 + 12 * k + 4 * j
            A(f"ds_read_b128 v[{b}:{b+3}], v4 offset:{8192*j + 1024*k}")
    for n in range(2):
        for tp in range(2):
            o = 8 + 8 * n + 4 * tp
            for tt in range(2):
                k = n * 4 + 2 * tp + tt; d = ACC + 4 * k; b = 32 + 12 * k
                A(f"s_waitcnt lgkmcnt({min(15, 3 * (7 - k))})")
                for r in range(4): A(f"v_add_f32 v{b+r}, v{b+r}, v{b+4+r}\nv_add_f32 v{d+r}, v{d+r}, v{b+8+r}")
                for r in range(4): A(f"v_add_f32 v{d+r}, v{d+r}, v{b+r}")
                A(f"v_cvt_pk_bf16_f32 v{o+2*tt}, v{d}, v{d+1}\nv_cvt_pk_bf16_f32 v{o+2*tt+1}, v{d+2}, v{d+3}")
            A(f"""s_nop 1
            v_permlane16_swap_b32 v{o}, v{o+2}
            v_permlane16_swap_b32 v{o+1}, v{o+3}
            buffer_store_dwordx4 v[{o}:{o+3}], v{5+n}, s[{S_OUT}:{S_OUT+3}], s67 offen offset:{64*tp}""")
    A(f"{L}_end:\ns_endpgm")
    return A.text(), desc(name, 256 + 160, 256, 80), f"; @launch kernel={name} grid=(256,1,1) block=(256,1,1) lds=163840"
```

```python
from common import *
def gen_ln(name):
    A = Asm()
    header(A, name)
    A(f"""
    s_cmp_ge_u32 s2, 128
    s_cbranch_scc1 L_{name}_end
    s_load_dwordx2 s[4:5], s[0:1], 0
    s_load_dwordx2 s[6:7], s[0:1], 72
    v_and_b32 v1, 15, v0              ; t
    v_bfe_u32 v2, v0, 4, 2            ; g
    v_lshrrev_b32 v3, 6, v0           ; w
    v_lshlrev_b32 v4, 11, v1          ; t*2048
    v_lshl_add_u32 v4, v2, 4, v4      ; + g*16
    v_lshl_add_u32 v4, v3, 8, v4      ; + w*256
    s_lshl_b32 s3, s2, 15             ; tt*32768
    v_and_b32 v5, 63, v0
    v_lshlrev_b32 v5, 4, v5           ; lane*16
    v_lshl_add_u32 v5, v3, 19, v5     ; + w*4*131072
    s_lshl_b32 s16, s2, 10            ; tt*1024
    v_lshlrev_b32 v6, 5, v1
    v_lshl_add_u32 v7, v3, 2, v6
    s_waitcnt lgkmcnt(0)
    """)
    srd(A, 8, 4, 5, 0, 2048*1024*2)
    srd(A, 12, 6, 7, WS_XN, 4 << 20)
    for i in range(4):
        A(f"buffer_load_dwordx4 v[{8+4*i}:{11+4*i}], v4, s[8:11], s3 offen offset:{64*i}")
    for i in range(4):
        A(f"s_waitcnt vmcnt({3-i})")
        for j in range(4):
            r = 8 + 4*i + j
            A(f"v_lshlrev_b32 v{32+8*i+2*j}, 16, v{r}\nv_and_b32 v{33+8*i+2*j}, 0xffff0000, v{r}")
    def tree(dst, srcs, tmp):
        cur = list(srcs); t = tmp
        while len(cur) > 1:
            nxt = []
            for k in range(0, len(cur), 2):
                d = dst if len(cur) == 2 else t + k//2
                A(f"v_add_f32 v{d}, v{cur[k]}, v{cur[k+1]}")
                nxt.append(d)
            cur = nxt
    def xreduce(r, ldsoff):
        A(f"""
        v_mov_b32 v25, v{r}
        s_nop 1
        v_permlane32_swap_b32 v{r}, v25
        s_nop 1
        v_add_f32 v{r}, v{r}, v25
        v_mov_b32 v25, v{r}
        s_nop 1
        v_permlane16_swap_b32 v{r}, v25
        s_nop 1
        v_add_f32 v{r}, v{r}, v25
        ds_write_b32 v7, v{r} offset:{ldsoff}
        s_waitcnt lgkmcnt(0)
        s_barrier
        ds_read_b128 v[8:11], v6 offset:{ldsoff}
        ds_read_b128 v[12:15], v6 offset:{ldsoff+16}
        s_waitcnt lgkmcnt(0)
        """)
        tree(r, range(8, 16), 16)
    tree(24, range(32, 64), 8)
    xreduce(24, 0)
    A("v_mul_f32 v24, 0x3a800000, v24")
    for k in range(32):
        d = 8 + (k % 16)
        if k < 16:
            A(f"v_sub_f32 v{d}, v{32+k}, v24\nv_mul_f32 v{d}, v{d}, v{d}")
        else:
            A(f"v_sub_f32 v26, v{32+k}, v24\nv_fmac_f32 v{d}, v26, v26")
    tree(27, range(8, 24), 8)
    xreduce(27, 512)
    A(f"""
    v_mul_f32 v27, 0x3a800000, v27          ; var
    v_cvt_pk_bf16_f32 v27, v27, v24
    v_and_b32 v24, 0xffff0000, v27          ; mean_bf
    v_lshlrev_b32 v27, 16, v27              ; var_bf
    v_add_f32 v27, 0x3727c5ac, v27          ; + 1e-5
    v_cvt_pk_bf16_f32 v27, v27, v27
    v_lshlrev_b32 v27, 16, v27
    v_sqrt_f32 v27, v27
    s_nop 0
    v_cvt_pk_bf16_f32 v27, v27, v27
    v_lshlrev_b32 v27, 16, v27
    v_rcp_f32 v27, v27
    s_mov_b32 s17, 0xffff0000
    """)
    for i in range(4):
        for j in range(4):
            k = 32 + 8*i + 2*j
            d = 8 + 4*i + j
            A(f"""
            v_sub_f32 v{k}, v{k}, v24
            v_sub_f32 v{k+1}, v{k+1}, v24
            v_cvt_pk_bf16_f32 v{d}, v{k}, v{k+1}
            v_lshlrev_b32 v{k}, 16, v{d}
            v_and_b32 v{k+1}, s17, v{d}
            v_mul_f32 v{k}, v{k}, v27
            v_mul_f32 v{k+1}, v{k+1}, v27
            v_cvt_pk_bf16_f32 v{d}, v{k}, v{k+1}
            """)
        A(f"buffer_store_dwordx4 v[{8+4*i}:{11+4*i}], v5, s[12:15], s16 offen")
        if i < 3: A(f"s_add_u32 s16, s16, {131072}")
    A(f"L_{name}_end:\ns_endpgm")
    return A.text(), desc(name, 64, 64, 32), f"; @launch kernel={name} grid=(128,1,1) block=(512,1,1) lds=1024"
```

```python
import sys, importlib
sys.path.insert(0, 'gen')
from common import *
import hazard
def build(parts, out):
    ref = open('cdna_kernels/' + KPREFIX + '.s.ref').read().split('\n')
    hdr = [l for l in ref if l.startswith(';') and not l.startswith('; @launch') and 'Override' not in l and 'grid=ceil' not in l]
    txt = "\n".join(hdr) + "\n" + "\n".join(p[2] for p in parts) + "\n"
    txt += '.amdgcn_target "amdgcn-amd-amdhsa--gfx950"\n'
    txt += "".join(p[0] for p in parts) + "".join(p[1] for p in parts)
    open(out, 'w').write(txt)
    nb = sum(hazard.check(p[0]) for p in parts)
    print("written", out, len(txt), "bytes; hazards:", nb)
if __name__ == '__main__':
    from k_ln import gen_ln
    from k_gemm1 import gen_gemm1
    parts = [gen_ln("ln_kernel"), gen_gemm1("gemm1_kernel")]
    which = sys.argv[2] if len(sys.argv) > 2 else "all"
    if which == "all" or 'a' in which:
        from k_att import gen_att
        parts.append(gen_att("att_kernel"))
    if which == "all":
        from k_gemm2 import gen_gemm2
        parts.append(gen_gemm2(KPREFIX + "_kernel"))
    build(parts, sys.argv[1])
```
